```python
import torch

def _softmax(x, axis=-1):
    return torch.softmax(x, dim=axis)
def _gelu(x):
    return torch.nn.functional.gelu(x, approximate="tanh")
def _silu(x):
    return torch.nn.functional.silu(x)
def _sigmoid(x):
    return torch.sigmoid(x)
def _layernorm(x, axis=-1, eps=1e-5):
    m = x.mean(dim=axis, keepdim=True)
    v = x.var(dim=axis, keepdim=True, unbiased=False)
    return (x - m) / torch.sqrt(v + eps)
def _scatter_add(tgt, idx, src, axis=0):
    return tgt.clone().index_add_(axis, idx, src)
def _segment_sum(src, seg, n):
    out = torch.zeros((n,) + src.shape[1:], dtype=src.dtype)
    return out.index_add_(0, seg, src)
def _pad(x, pw):
    flat = tuple(v for pair in reversed(pw) for v in pair)
    return torch.nn.functional.pad(x, flat)

kernel_name = 'gated_mix__softmax_full_mha__sliding_local_dilated__prompt'

def setup_inputs():

    _w = (lambda a: (lambda t: t.to(torch.bfloat16) if t.is_floating_point() else t)(torch.as_tensor(a)))
    def _A_setup():
        B, S, D = 1, 2048, 640
        return {
            "x": _w((lambda *s: torch.randn(*s, dtype=torch.bfloat16) * 0.05)(B, S, D)),
            "wqkv": _w((lambda *s: torch.randn(*s, dtype=torch.bfloat16) * 1.6)(D, 3 * D)),
            "wo": _w((lambda *s: torch.randn(*s, dtype=torch.bfloat16) * 0.1)(D, D)),
        }
    _A_in = _A_setup()

    def _B_setup():
        B, S, D = 1, 2048, 640
        return {
            "x": _w((lambda *s: torch.randn(*s, dtype=torch.bfloat16) * 0.05)(B, S, D)),
            "wqkv": _w((lambda *s: torch.randn(*s, dtype=torch.bfloat16) * 1.6)(D, 3 * D)),
            "wo": _w((lambda *s: torch.randn(*s, dtype=torch.bfloat16) * 0.05)(D, D)),
        }
    _B_in = _B_setup()

    return {
        "A_x": _A_in["x"],
        "A_wqkv": _A_in["wqkv"],
        "A_wo": _A_in["wo"],
        "B_x": _B_in["x"],
        "B_wqkv": _B_in["wqkv"],
        "B_wo": _B_in["wo"],
        "gate_w": _w((lambda *s: torch.randn(*s, dtype=torch.bfloat16) * 0.05)(640) * 16.0),
    }

def reference(A_x, A_wqkv, A_wo, B_x, B_wqkv, B_wo, gate_w):
    def _A_ref(x, wqkv, wo):
        B, S, D = x.shape
        H = 32; Dh = D // H
        qkv = (lambda x, *d: x.permute(*d))((x @ wqkv).reshape(B, S, 3, H, Dh), 2, 0, 3, 1, 4)
        q, k, v = qkv[0], qkv[1], qkv[2]
        scale = Dh ** -0.5
        scores = torch.einsum("bhqd,bhkd->bhqk", q, k) * scale
        p = _softmax(scores, axis=-1)
        o = torch.einsum("bhqk,bhkd->bhqd", p, v)
        return (lambda x, *d: x.permute(*d))(o, 0, 2, 1, 3).reshape(B, S, D) @ wo

    def _B_ref(x, wqkv, wo):
        B, S, D = x.shape
        H = 32; Dh = D // H
        W, dil = 8, 2
        qkv = (lambda x, *d: x.permute(*d))((x @ wqkv).reshape(B, S, 3, H, Dh), 2, 0, 3, 1, 4)
        q, k, v = qkv[0], qkv[1], qkv[2]
        scale = Dh ** -0.5
        pos = torch.arange(S)
        off = torch.arange(W) * dil
        idx = pos[:, None] - off[None, :]
        mask = idx >= 0
        idx_c = torch.where(mask, idx, 0).reshape(-1)
        kg = k[:, :, idx_c, :].reshape(B, H, S, W, Dh)
        vg = v[:, :, idx_c, :].reshape(B, H, S, W, Dh)
        logits = torch.einsum("bhsd,bhswd->bhsw", q, kg) * scale
        logits = torch.where(mask[None, None, :, :], logits, -1e9)
        attn = _softmax(logits, axis=-1)
        o = torch.einsum("bhsw,bhswd->bhsd", attn, vg)
        return (lambda x, *d: x.permute(*d))(o, 0, 2, 1, 3).reshape(B, S, D) @ wo

    x = A_x
    g = _sigmoid((x * gate_w).sum(-1, keepdims=True))
    a = _A_ref(x, A_wqkv, A_wo)
    b = _B_ref(x, B_wqkv, B_wo)
    return g * a + (1 - g) * b
```

```python
import re

REG_RE = re.compile(r"\b([vsa])\[(\d+):(\d+)\]|\b([vsa])(\d+)\b|\b(vcc|exec|m0|scc)\b")


def v(n, cnt=1):
    return f"v{n}" if cnt == 1 else f"v[{n}:{n + cnt - 1}]"


def s(n, cnt=1):
    return f"s{n}" if cnt == 1 else f"s[{n}:{n + cnt - 1}]"


def a(n, cnt=1):
    return f"a{n}" if cnt == 1 else f"a[{n}:{n + cnt - 1}]"


def regs_of(text):
    out = []
    for m in REG_RE.finditer(text):
        if m.group(1):
            out += [(m.group(1), i) for i in range(int(m.group(2)), int(m.group(3)) + 1)]
        elif m.group(4):
            out.append((m.group(4), int(m.group(5))))
        else:
            name = m.group(6)
            if name in ("vcc", "exec"):
                out += [(name, 0), (name, 1)]
            else:
                out.append((name, 0))
    return out


TRANS = ("v_exp_", "v_log_", "v_rcp_", "v_rsq_", "v_sqrt_", "v_sin_", "v_cos_")
MFMA_PASSES = {
    "v_mfma_f32_32x32x16_bf16": 8,
    "v_mfma_f32_32x32x8bf16_1k": 8,
    "v_mfma_f32_16x16x32_bf16": 4,
    "v_mfma_f32_16x16x16bf16_1k": 4,
}


class Ins:
    __slots__ = ("text", "op", "kind", "defs", "uses", "mfma_c", "mfma_ab", "passes",
                 "store_data", "is_trans", "ws", "target", "lds_dma", "opsel")

    def __init__(self, text):
        self.text = text
        t = text.split(";")[0].strip()
        self.op = t.split()[0] if t else ""
        self.defs, self.uses = [], []
        self.mfma_c, self.mfma_ab, self.passes = [], [], 0
        self.store_data = []
        self.is_trans = False
        self.ws = 1
        self.target = None
        self.lds_dma = False
        self.opsel = False
        op = self.op
        rest = t[len(op):].strip()
        ops = [x.strip() for x in self._split(rest)]
        if not op or op.endswith(":") or op.startswith("."):
            self.kind = "label" if op.endswith(":") else "dir"
            self.ws = 0
            return
        if op.startswith("v_mfma"):
            self.kind = "mfma"
            self.passes = MFMA_PASSES[op]
            self.defs = regs_of(ops[0])
            self.mfma_ab = regs_of(ops[1]) + regs_of(ops[2])
            self.mfma_c = regs_of(ops[3].split()[0])
            self.uses = self.mfma_ab + self.mfma_c
        elif op.startswith("v_"):
            self.kind = "valu"
            self.is_trans = op.startswith(TRANS)
            self.opsel = "sdwa" in op or "op_sel" in t
            if op.startswith("v_permlane") and "swap" in op:
                self.defs = regs_of(ops[0]) + regs_of(ops[1])
                self.uses = list(self.defs)
            elif op.startswith(("v_add_co", "v_sub_co", "v_addc_co", "v_subb_co")):
                self.defs = regs_of(ops[0]) + regs_of(ops[1])
                self.uses = [r for o in ops[2:] for r in regs_of(o)]
            else:
                self.defs = regs_of(ops[0])
                self.uses = [r for o in ops[1:] for r in regs_of(o)]
                if op.startswith(("v_fmac", "v_dot2c", "v_writelane")) or "UNUSED_PRESERVE" in t:
                    self.uses += self.defs
                if op.startswith("v_cndmask") and len(ops) == 3:
                    self.uses += [("vcc", 0), ("vcc", 1)]
            if op.startswith("v_cmpx"):
                self.defs += [("exec", 0), ("exec", 1)]
        elif op.startswith("ds_"):
            self.kind = "ds"
            if op.startswith(("ds_read", "ds_bpermute", "ds_permute", "ds_swizzle")):
                self.defs = regs_of(ops[0])
                self.uses = [r for o in ops[1:] for r in regs_of(o)]
            else:
                self.uses = [r for o in ops for r in regs_of(o)]
        elif op.startswith(("buffer_", "global_")):
            self.kind = "vmem"
            words = t.split()
            self.lds_dma = "lds" in words
            allr = [r for o in ops for r in regs_of(o)]
            if op in ("buffer_wbl2", "buffer_inv"):
                pass
            elif self.lds_dma:
                self.uses = allr + [("m0", 0)]
            elif "load" in op:
                self.defs = regs_of(ops[0])
                self.uses = [r for o in ops[1:] for r in regs_of(o)]
            elif "atomic" in op:
                self.uses = allr
                if "sc0" in words:
                    self.defs = regs_of(ops[0])
            else:
                self.uses = allr
                if op.startswith("buffer_store"):
                    self.store_data = regs_of(ops[0])
                else:
                    self.store_data = regs_of(ops[1])
                if not op.endswith(("x3", "x4")):
                    self.store_data = []
        elif op.startswith("s_"):
            self.kind = "salu"
            if op == "s_nop":
                self.ws = int(ops[0], 0) + 1
            elif op.startswith(("s_cbranch", "s_branch")):
                self.kind = "branch"
                self.target = ops[0]
                if "vcc" in op:
                    self.uses = [("vcc", 0), ("vcc", 1)]
                if "exec" in op:
                    self.uses = [("exec", 0), ("exec", 1)]
            elif op.startswith(("s_cmp", "s_waitcnt", "s_barrier", "s_endpgm", "s_setprio", "s_sleep", "s_bitcmp")):
                self.uses = [r for o in ops for r in regs_of(o)]
            else:
                self.defs = regs_of(ops[0]) if ops else []
                self.uses = [r for o in ops[1:] for r in regs_of(o)]
                if "saveexec" in op:
                    self.defs += [("exec", 0), ("exec", 1)]
        else:
            raise ValueError("cannot classify: " + text)

    @staticmethod
    def _split(rest):
        out, depth, cur = [], 0, ""
        for ch in rest:
            if ch == "[":
                depth += 1
            elif ch == "]":
                depth -= 1
            if ch == "," and depth == 0:
                out.append(cur)
                cur = ""
            else:
                cur += ch
        if cur.strip():
            out.append(cur)
        return out


def _isvec(r):
    return r[0] in ("v", "a")


def _issca(r):
    return r[0] in ("s", "vcc")


XDL_TO_VALU = {2: 5, 4: 8, 8: 12, 16: 20}
XDL_TO_C_OVERLAP = {2: 4, 4: 6, 8: 10, 16: 18}
XDL_C_WAR = {2: 1, 4: 3, 8: 7, 16: 15}


def required_ws(p, c):
    need = 0
    pd = set(p.defs)
    cu, cd = set(c.uses), set(c.defs)
    if p.kind == "mfma":
        if c.kind == "mfma":
            if pd & set(c.mfma_ab):
                need = max(need, XDL_TO_VALU[p.passes])
            ov = pd & set(c.mfma_c)
            if ov:
                same = p.defs == c.mfma_c and p.passes == c.passes
                if not same:
                    need = max(need, XDL_TO_C_OVERLAP[p.passes])
                elif p.passes == 2:
                    need = max(need, 2)
            elif pd & cd:
                need = max(need, XDL_TO_C_OVERLAP[p.passes])
        elif c.kind in ("valu", "ds", "vmem"):
            if pd & (cu | cd):
                need = max(need, XDL_TO_VALU[p.passes])
            if c.kind == "valu" and set(p.mfma_c) & cd:
                need = max(need, XDL_C_WAR[p.passes])
    elif p.kind == "valu":
        pv = {r for r in pd if _isvec(r)}
        ps = {r for r in pd if _issca(r)}
        if c.kind == "mfma" and pv & cu:
            need = max(need, 2)
        if c.kind == "mfma" and ("exec", 0) in pd:
            need = max(need, 4)
        if p.op.startswith("v_dot") and c.kind in ("valu", "vmem", "ds", "mfma") and pv & (cu | cd):
            if not (c.op == p.op and not (pv & set(regs_of(",".join(Ins._split(c.text.split(None, 1)[1])[1:3]))))):
                need = max(need, 3)
        if c.kind == "valu":
            if c.op.startswith("v_permlane") and pv & cu:
                need = max(need, 2)
            if c.op.startswith(("v_readlane", "v_readfirstlane")) and pv & cu:
                need = max(need, 1)
            if ("dpp" in c.text or "quad_perm" in c.text or "row_" in c.text) and pv & cu:
                need = max(need, 2)
            if p.is_trans and not c.is_trans and pv & cu:
                need = max(need, 1)
            if p.opsel and pv & (cu | cd):
                need = max(need, 1)
            if ps & cu:
                need = max(need, 4 if c.op.startswith(("v_readlane", "v_writelane", "v_div_fmas")) else 2)
            if ("exec", 0) in pd:
                need = max(need, 5 if "dpp" in c.text else 4 if c.op.startswith(("v_read", "v_writelane", "v_permlane")) else 0)
        if c.kind == "vmem" and ps & cu:
            need = max(need, 5)
        if c.kind == "salu" and ps & cu:
            need = max(need, 4)
        if c.kind == "branch" and ps & cu:
            need = max(need, 5)
    elif p.kind == "vmem":
        if p.store_data and set(p.store_data) & cd:
            need = max(need, 2 if c.kind == "valu" else 1)
    elif p.kind == "salu":
        if ("m0", 0) in pd and c.kind == "vmem" and c.lds_dma:
            need = max(need, 1)
    return need


WINDOW = 24


class Kernel:
    def __init__(self, name):
        self.name = name
        self.lines = []

    def __call__(self, text):
        for ln in text.split("\n"):
            ln = ln.strip()
            if ln:
                self.lines.append(ln)

    def label(self, name):
        self.lines.append(name + ":")

    def stamp(self, idx, sreg=88, dbgptr_loaded=False):
        self(f"s_memtime s[{sreg}:{sreg+1}]")
        self(f"s_waitcnt lgkmcnt(0)")
        self(f"s_mov_b32 s{70+2*idx}, s{sreg}")
        self(f"s_memrealtime s[{sreg}:{sreg+1}]")
        self(f"s_waitcnt lgkmcnt(0)")
        self(f"s_mov_b32 s{71+2*idx}, s{sreg}")

    def dump_stamps(self, n, wave_sgpr, off=0x2000000):
        lab = f"{self.name}_ds{len(self.lines)}"
        self(f"s_cmp_lg_u32 s{wave_sgpr}, 0")
        self(f"s_cbranch_scc1 {lab}")
        self("s_load_dwordx2 s[88:89], s[0:1], 72")
        self("s_waitcnt lgkmcnt(0)")
        self("s_mov_b32 s90, 0x10000000")
        self("s_mov_b32 s91, 0x20000")
        self("s_mov_b32 s92, s88")
        self("s_mov_b32 s93, s89")
        self("s_mov_b32 s94, 0x10000000")
        self("s_mov_b32 s95, 0x20000")
        self(f"s_lshl_b32 s88, s2, 6")
        self(f"s_add_u32 s88, s88, {off}")
        for i in range(2 * n):
            self(f"v_mov_b32 v0, s{70+i}")
            self(f"v_mov_b32 v1, s88")
            self(f"buffer_store_dword v0, v1, s[92:95], 0 offen offset:{4*i}")
        self("s_waitcnt vmcnt(0)")
        self.label(lab)

    def finalize(self, verbose=False):
        ins = [Ins(t) for t in self.lines]
        out = []
        inserted = 0
        for c in ins:
            if c.kind in ("label", "dir"):
                out.append(c)
                continue
            dist = 0
            lack = 0
            who = None
            for p in reversed(out):
                if p.kind in ("label", "dir"):
                    continue
                if dist >= WINDOW:
                    break
                need = required_ws(p, c)
                if need - dist > lack:
                    lack, who = need - dist, p
                dist += p.ws
                if p.op in ("s_branch", "s_endpgm"):
                    break
            if lack > 0:
                if verbose:
                    print(f"; nop {lack} before [{c.text}] after [{who.text}]")
                n = lack
                while n > 0:
                    k = min(n, 16)
                    out.append(Ins(f"s_nop {k - 1}"))
                    n -= k
                inserted += lack
            out.append(c)
        self._check_edges(out)
        self.nops_inserted = inserted
        return "\n".join(("" if i.kind == "label" else "  ") + i.text for i in out)

    def _check_edges(self, out):
        labels = {i.op[:-1]: n for n, i in enumerate(out) if i.kind == "label"}
        for n, b in enumerate(out):
            if b.kind != "branch" or b.target not in labels:
                continue
            tail = []
            d = 0
            for p in reversed(out[: n + 1]):
                if p.kind in ("label", "dir"):
                    continue
                tail.append(p)
                d += p.ws
                if d >= WINDOW:
                    break
            head = []
            d = 0
            for c in out[labels[b.target]:]:
                if c.kind in ("label", "dir"):
                    continue
                head.append(c)
                d += c.ws
                if d >= WINDOW or c.op in ("s_branch", "s_endpgm"):
                    break
            hd = 0
            for c in head:
                dist = hd
                for p in tail:
                    need = required_ws(p, c)
                    if need > dist:
                        raise RuntimeError(
                            f"hazard across branch to {b.target}: [{p.text}] -> [{c.text}] needs {need}, has {dist}")
                    dist += p.ws
                hd += c.ws


def descriptor(name, vgpr, sgpr=96, accum=None, wg_y=False):
    accum = accum if accum is not None else (vgpr + 3) // 4 * 4
    return f""".p2align 6
.amdhsa_kernel {name}
  .amdhsa_next_free_vgpr {vgpr}
  .amdhsa_next_free_sgpr {sgpr}
  .amdhsa_accum_offset {accum}
  .amdhsa_group_segment_fixed_size 0
  .amdhsa_kernarg_size 80
  .amdhsa_user_sgpr_count 2
  .amdhsa_user_sgpr_kernarg_segment_ptr 1
  .amdhsa_system_sgpr_workgroup_id_x 1
  .amdhsa_float_denorm_mode_32 3
.end_amdhsa_kernel"""
```

```python
import sys, importlib
sys.path.insert(0, "gen")
NAME = "gated_mix__softmax_full_mha__sliding_local_dilated__prompt"
HEADER = open(f"cdna_kernels/{NAME}.s.ref").read().split("; Override launch")[0]

def assemble(mods, out, verbose=False):
    from asmlib import descriptor
    launches, texts, descs = [], [], []
    for m in mods:
        k, name, cfg = m
        body = k.finalize(verbose)
        launches.append(f"; @launch kernel={name} grid=({cfg['grid']},1,1) block=({cfg['block']},1,1) lds={cfg['lds']}")
        texts.append(f".globl {name}\n.p2align 8\n.type {name},@function\n{name}:\n{body}")
        descs.append(descriptor(name, cfg["vgpr"], cfg.get("sgpr", 96), cfg.get("accum")))
        print(f"{name}: {len(body.splitlines())} lines, nops inserted {k.nops_inserted}", file=sys.stderr)
    s = HEADER + "\n".join(launches) + "\n"
    s += '.amdgcn_target "amdgcn-amd-amdhsa--gfx950"\n.text\n' + "\n".join(texts) + "\ntext_end:"
    s += '\n.section .rodata,"a"\n' + "\n".join(descs) + "\n"
    open(out, "w").write(s)

if __name__ == "__main__":
    import argparse
    ap = argparse.ArgumentParser()
    ap.add_argument("mods")
    ap.add_argument("-o", default="out.s")
    ap.add_argument("-v", action="store_true")
    a = ap.parse_args()
    mods = []
    for m in a.mods.split(","):
        mod, _, args = m.partition(":")
        kw = dict(x.split("=") for x in args.split("/") if x)
        kw = {k_: int(v_) for k_, v_ in kw.items()}
        r = importlib.import_module(mod).build(**kw)
        mods += r if isinstance(r, list) else [r]
    assemble(mods, a.o, a.v)
```

```python
import re

REG_RE = re.compile(r"\b([vsa])\[(\d+):(\d+)\]|\b([vsa])(\d+)\b|\b(vcc|exec|m0|scc)\b")


def v(n, cnt=1):
    return f"v{n}" if cnt == 1 else f"v[{n}:{n + cnt - 1}]"


def s(n, cnt=1):
    return f"s{n}" if cnt == 1 else f"s[{n}:{n + cnt - 1}]"


def a(n, cnt=1):
    return f"a{n}" if cnt == 1 else f"a[{n}:{n + cnt - 1}]"


def regs_of(text):
    out = []
    for m in REG_RE.finditer(text):
        if m.group(1):
            out += [(m.group(1), i) for i in range(int(m.group(2)), int(m.group(3)) + 1)]
        elif m.group(4):
            out.append((m.group(4), int(m.group(5))))
        else:
            name = m.group(6)
            if name in ("vcc", "exec"):
                out += [(name, 0), (name, 1)]
            else:
                out.append((name, 0))
    return out


TRANS = ("v_exp_", "v_log_", "v_rcp_", "v_rsq_", "v_sqrt_", "v_sin_", "v_cos_")
MFMA_PASSES = {
    "v_mfma_f32_32x32x16_bf16": 8,
    "v_mfma_f32_32x32x8bf16_1k": 8,
    "v_mfma_f32_16x16x32_bf16": 4,
    "v_mfma_f32_16x16x16bf16_1k": 4,
}


class Ins:
    __slots__ = ("text", "op", "kind", "defs", "uses", "mfma_c", "mfma_ab", "passes",
                 "store_data", "is_trans", "ws", "target", "lds_dma", "opsel")

    def __init__(self, text):
        self.text = text
        t = text.split(";")[0].strip()
        self.op = t.split()[0] if t else ""
        self.defs, self.uses = [], []
        self.mfma_c, self.mfma_ab, self.passes = [], [], 0
        self.store_data = []
        self.is_trans = False
        self.ws = 1
        self.target = None
        self.lds_dma = False
        self.opsel = False
        op = self.op
        rest = t[len(op):].strip()
        ops = [x.strip() for x in self._split(rest)]
        if not op or op.endswith(":") or op.startswith("."):
            self.kind = "label" if op.endswith(":") else "dir"
            self.ws = 0
            return
        if op.startswith("v_mfma"):
            self.kind = "mfma"
            self.passes = MFMA_PASSES[op]
            self.defs = regs_of(ops[0])
            self.mfma_ab = regs_of(ops[1]) + regs_of(ops[2])
            self.mfma_c = regs_of(ops[3].split()[0])
            self.uses = self.mfma_ab + self.mfma_c
        elif op.startswith("v_"):
            self.kind = "valu"
            self.is_trans = op.startswith(TRANS)
            self.opsel = "sdwa" in op or "op_sel" in t
            if op.startswith("v_permlane") and "swap" in op:
                self.defs = regs_of(ops[0]) + regs_of(ops[1])
                self.uses = list(self.defs)
            elif op.startswith(("v_add_co", "v_sub_co", "v_addc_co", "v_subb_co")):
                self.defs = regs_of(ops[0]) + regs_of(ops[1])
                self.uses = [r for o in ops[2:] for r in regs_of(o)]
            else:
                self.defs = regs_of(ops[0])
                self.uses = [r for o in ops[1:] for r in regs_of(o)]
                if op.startswith(("v_fmac", "v_dot2c", "v_writelane")) or "UNUSED_PRESERVE" in t:
                    self.uses += self.defs
                if op.startswith("v_cndmask") and len(ops) == 3:
                    self.uses += [("vcc", 0), ("vcc", 1)]
            if op.startswith("v_cmpx"):
                self.defs += [("exec", 0), ("exec", 1)]
        elif op.startswith("ds_"):
            self.kind = "ds"
            if op.startswith(("ds_read", "ds_bpermute", "ds_permute", "ds_swizzle")):
                self.defs = regs_of(ops[0])
                self.uses = [r for o in ops[1:] for r in regs_of(o)]
            else:
                self.uses = [r for o in ops for r in regs_of(o)]
        elif op.startswith(("buffer_", "global_")):
            self.kind = "vmem"
            words = t.split()
            self.lds_dma = "lds" in words
            allr = [r for o in ops for r in regs_of(o)]
            if op in ("buffer_wbl2", "buffer_inv"):
                pass
            elif self.lds_dma:
                self.uses = allr + [("m0", 0)]
            elif "load" in op:
                self.defs = regs_of(ops[0])
                self.uses = [r for o in ops[1:] for r in regs_of(o)]
            elif "atomic" in op:
                self.uses = allr
                if "sc0" in words:
                    self.defs = regs_of(ops[0])
            else:
                self.uses = allr
                if op.startswith("buffer_store"):
                    self.store_data = regs_of(ops[0])
                else:
                    self.store_data = regs_of(ops[1])
                if not op.endswith(("x3", "x4")):
                    self.store_data = []
        elif op.startswith("s_"):
            self.kind = "salu"
            if op == "s_nop":
                self.ws = int(ops[0], 0) + 1
            elif op.startswith(("s_cbranch", "s_branch")):
                self.kind = "branch"
                self.target = ops[0]
                if "vcc" in op:
                    self.uses = [("vcc", 0), ("vcc", 1)]
                if "exec" in op:
                    self.uses = [("exec", 0), ("exec", 1)]
            elif op.startswith(("s_cmp", "s_waitcnt", "s_barrier", "s_endpgm", "s_setprio", "s_sleep", "s_bitcmp")):
                self.uses = [r for o in ops for r in regs_of(o)]
            else:
                self.defs = regs_of(ops[0]) if ops else []
                self.uses = [r for o in ops[1:] for r in regs_of(o)]
                if "saveexec" in op:
                    self.defs += [("exec", 0), ("exec", 1)]
        else:
            raise ValueError("cannot classify: " + text)

    @staticmethod
    def _split(rest):
        out, depth, cur = [], 0, ""
        for ch in rest:
            if ch == "[":
                depth += 1
            elif ch == "]":
                depth -= 1
            if ch == "," and depth == 0:
                out.append(cur)
                cur = ""
            else:
                cur += ch
        if cur.strip():
            out.append(cur)
        return out


def _isvec(r):
    return r[0] in ("v", "a")


def _issca(r):
    return r[0] in ("s", "vcc")


XDL_TO_VALU = {2: 5, 4: 8, 8: 12, 16: 20}
XDL_TO_C_OVERLAP = {2: 4, 4: 6, 8: 10, 16: 18}
XDL_C_WAR = {2: 1, 4: 3, 8: 7, 16: 15}


def required_ws(p, c):
    need = 0
    pd = set(p.defs)
    cu, cd = set(c.uses), set(c.defs)
    if p.kind == "mfma":
        if c.kind == "mfma":
            if pd & set(c.mfma_ab):
                need = max(need, XDL_TO_VALU[p.passes])
            ov = pd & set(c.mfma_c)
            if ov:
                same = p.defs == c.mfma_c and p.passes == c.passes
                if not same:
                    need = max(need, XDL_TO_C_OVERLAP[p.passes])
                elif p.passes == 2:
                    need = max(need, 2)
            elif pd & cd:
                need = max(need, XDL_TO_C_OVERLAP[p.passes])
        elif c.kind in ("valu", "ds", "vmem"):
            if pd & (cu | cd):
                need = max(need, XDL_TO_VALU[p.passes])
            if c.kind == "valu" and set(p.mfma_c) & cd:
                need = max(need, XDL_C_WAR[p.passes])
    elif p.kind == "valu":
        pv = {r for r in pd if _isvec(r)}
        ps = {r for r in pd if _issca(r)}
        if c.kind == "mfma" and pv & cu:
            need = max(need, 2)
        if c.kind == "mfma" and ("exec", 0) in pd:
            need = max(need, 4)
        if p.op.startswith("v_dot") and c.kind in ("valu", "vmem", "ds", "mfma") and pv & (cu | cd):
            if not (c.op == p.op and not (pv & set(regs_of(",".join(Ins._split(c.text.split(None, 1)[1])[1:3]))))):
                need = max(need, 3)
        if c.kind == "valu":
            if c.op.startswith("v_permlane") and pv & cu:
                need = max(need, 2)
            if c.op.startswith(("v_readlane", "v_readfirstlane")) and pv & cu:
                need = max(need, 1)
            if ("dpp" in c.text or "quad_perm" in c.text or "row_" in c.text) and pv & cu:
                need = max(need, 2)
            if p.is_trans and not c.is_trans and pv & cu:
                need = max(need, 1)
            if p.opsel and pv & (cu | cd):
                need = max(need, 1)
            if ps & cu:
                need = max(need, 4 if c.op.startswith(("v_readlane", "v_writelane", "v_div_fmas")) else 2)
            if ("exec", 0) in pd:
                need = max(need, 5 if "dpp" in c.text else 4 if c.op.startswith(("v_read", "v_writelane", "v_permlane")) else 0)
        if c.kind == "vmem" and ps & cu:
            need = max(need, 5)
        if c.kind == "salu" and ps & cu:
            need = max(need, 4)
        if c.kind == "branch" and ps & cu:
            need = max(need, 5)
    elif p.kind == "vmem":
        if p.store_data and set(p.store_data) & cd:
            need = max(need, 2 if c.kind == "valu" else 1)
    elif p.kind == "salu":
        if ("m0", 0) in pd and c.kind == "vmem" and c.lds_dma:
            need = max(need, 1)
    return need


WINDOW = 24


class Kernel:
    def __init__(self, name):
        self.name = name
        self.lines = []

    def __call__(self, text):
        for ln in text.split("\n"):
            ln = ln.strip()
            if ln:
                self.lines.append(ln)

    def label(self, name):
        self.lines.append(name + ":")

    def stamp(self, idx, sreg=88, dbgptr_loaded=False):
        self(f"s_memtime s[{sreg}:{sreg+1}]")
        self(f"s_waitcnt lgkmcnt(0)")
        self(f"s_mov_b32 s{70+2*idx}, s{sreg}")
        self(f"s_memrealtime s[{sreg}:{sreg+1}]")
        self(f"s_waitcnt lgkmcnt(0)")
        self(f"s_mov_b32 s{71+2*idx}, s{sreg}")

    def dump_stamps(self, n, wave_sgpr, off=0x2000000):
        lab = f"{self.name}_ds{len(self.lines)}"
        self(f"s_cmp_lg_u32 s{wave_sgpr}, 0")
        self(f"s_cbranch_scc1 {lab}")
        self("s_load_dwordx2 s[88:89], s[0:1], 72")
        self("s_waitcnt lgkmcnt(0)")
        self("s_mov_b32 s90, 0x10000000")
        self("s_mov_b32 s91, 0x20000")
        self("s_mov_b32 s92, s88")
        self("s_mov_b32 s93, s89")
        self("s_mov_b32 s94, 0x10000000")
        self("s_mov_b32 s95, 0x20000")
        self(f"s_lshl_b32 s88, s2, 6")
        self(f"s_add_u32 s88, s88, {off}")
        for i in range(2 * n):
            self(f"v_mov_b32 v0, s{70+i}")
            self(f"v_mov_b32 v1, s88")
            self(f"buffer_store_dword v0, v1, s[92:95], 0 offen offset:{4*i}")
        self("s_waitcnt vmcnt(0)")
        self.label(lab)

    def code_prefetch(self, start_label, nbytes, wave_sgpr, vtmp, vdst, stmp):
        lab = f"{self.name}_pf{len(self.lines)}"
        self(f"s_getpc_b64 s[{stmp}:{stmp + 1}]")
        self.label(lab)
        self(f"s_sub_u32 s{stmp}, s{stmp}, {lab}-{start_label}")
        self(f"s_subb_u32 s{stmp + 1}, s{stmp + 1}, 0")
        self(f"s_lshr_b32 s{stmp + 2}, s2, 3")
        self(f"s_lshl_b32 s{stmp + 2}, s{stmp + 2}, 3")
        self(f"s_add_u32 s{stmp + 2}, s{stmp + 2}, s{wave_sgpr}")
        self(f"s_lshl_b32 s{stmp + 2}, s{stmp + 2}, 10")
        self(f"s_cmp_ge_u32 s{stmp + 2}, {nbytes}")
        self(f"s_cbranch_scc1 {lab}_done")
        self(f"v_and_b32 v{vtmp}, 63, v0")
        self(f"v_lshlrev_b32 v{vtmp}, 4, v{vtmp}")
        self(f"v_add_u32 v{vtmp}, s{stmp + 2}, v{vtmp}")
        self(f"global_load_dwordx4 v[{vdst}:{vdst + 3}], v{vtmp}, s[{stmp}:{stmp + 1}]")
        self.label(lab + "_done")

    def finalize(self, verbose=False):
        ins = [Ins(t) for t in self.lines]
        out = []
        inserted = 0
        for c in ins:
            if c.kind in ("label", "dir"):
                out.append(c)
                continue
            dist = 0
            lack = 0
            who = None
            for p in reversed(out):
                if p.kind in ("label", "dir"):
                    continue
                if dist >= WINDOW:
                    break
                need = required_ws(p, c)
                if need - dist > lack:
                    lack, who = need - dist, p
                dist += p.ws
                if p.op in ("s_branch", "s_endpgm"):
                    break
            if lack > 0:
                if verbose:
                    print(f"; nop {lack} before [{c.text}] after [{who.text}]")
                n = lack
                while n > 0:
                    k = min(n, 16)
                    out.append(Ins(f"s_nop {k - 1}"))
                    n -= k
                inserted += lack
            out.append(c)
        self._check_edges(out)
        self.nops_inserted = inserted
        return "\n".join(("" if i.kind == "label" else "  ") + i.text for i in out)

    def _check_edges(self, out):
        labels = {i.op[:-1]: n for n, i in enumerate(out) if i.kind == "label"}
        for n, b in enumerate(out):
            if b.kind != "branch" or b.target not in labels:
                continue
            tail = []
            d = 0
            for p in reversed(out[: n + 1]):
                if p.kind in ("label", "dir"):
                    continue
                tail.append(p)
                d += p.ws
                if d >= WINDOW:
                    break
            head = []
            d = 0
            for c in out[labels[b.target]:]:
                if c.kind in ("label", "dir"):
                    continue
                head.append(c)
                d += c.ws
                if d >= WINDOW or c.op in ("s_branch", "s_endpgm"):
                    break
            hd = 0
            for c in head:
                dist = hd
                for p in tail:
                    need = required_ws(p, c)
                    if need > dist:
                        raise RuntimeError(
                            f"hazard across branch to {b.target}: [{p.text}] -> [{c.text}] needs {need}, has {dist}")
                    dist += p.ws
                hd += c.ws


def descriptor(name, vgpr, sgpr=96, accum=None, wg_y=False):
    accum = accum if accum is not None else (vgpr + 3) // 4 * 4
    return f""".p2align 6
.amdhsa_kernel {name}
  .amdhsa_next_free_vgpr {vgpr}
  .amdhsa_next_free_sgpr {sgpr}
  .amdhsa_accum_offset {accum}
  .amdhsa_group_segment_fixed_size 0
  .amdhsa_kernarg_size 80
  .amdhsa_user_sgpr_count 2
  .amdhsa_user_sgpr_kernarg_segment_ptr 1
  .amdhsa_system_sgpr_workgroup_id_x 1
  .amdhsa_float_denorm_mode_32 3
.end_amdhsa_kernel"""
```

```python
import re

REG_RE = re.compile(r"\b([vsa])\[(\d+):(\d+)\]|\b([vsa])(\d+)\b|\b(vcc|exec|m0|scc)\b")


def v(n, cnt=1):
    return f"v{n}" if cnt == 1 else f"v[{n}:{n + cnt - 1}]"


def s(n, cnt=1):
    return f"s{n}" if cnt == 1 else f"s[{n}:{n + cnt - 1}]"


def a(n, cnt=1):
    return f"a{n}" if cnt == 1 else f"a[{n}:{n + cnt - 1}]"


def regs_of(text):
    out = []
    for m in REG_RE.finditer(text):
        if m.group(1):
            out += [(m.group(1), i) for i in range(int(m.group(2)), int(m.group(3)) + 1)]
        elif m.group(4):
            out.append((m.group(4), int(m.group(5))))
        else:
            name = m.group(6)
            if name in ("vcc", "exec"):
                out += [(name, 0), (name, 1)]
            else:
                out.append((name, 0))
    return out


TRANS = ("v_exp_", "v_log_", "v_rcp_", "v_rsq_", "v_sqrt_", "v_sin_", "v_cos_")
MFMA_PASSES = {
    "v_mfma_f32_32x32x16_bf16": 8,
    "v_mfma_f32_32x32x8bf16_1k": 8,
    "v_mfma_f32_16x16x32_bf16": 4,
    "v_mfma_f32_16x16x16bf16_1k": 4,
}


class Ins:
    __slots__ = ("text", "op", "kind", "defs", "uses", "mfma_c", "mfma_ab", "passes",
                 "store_data", "is_trans", "ws", "target", "lds_dma", "opsel")

    def __init__(self, text):
        self.text = text
        t = text.split(";")[0].strip()
        self.op = t.split()[0] if t else ""
        self.defs, self.uses = [], []
        self.mfma_c, self.mfma_ab, self.passes = [], [], 0
        self.store_data = []
        self.is_trans = False
        self.ws = 1
        self.target = None
        self.lds_dma = False
        self.opsel = False
        op = self.op
        rest = t[len(op):].strip()
        ops = [x.strip() for x in self._split(rest)]
        if not op or op.endswith(":") or op.startswith("."):
            self.kind = "label" if op.endswith(":") else "dir"
            self.ws = 0
            return
        if op.startswith("v_mfma"):
            self.kind = "mfma"
            self.passes = MFMA_PASSES[op]
            self.defs = regs_of(ops[0])
            self.mfma_ab = regs_of(ops[1]) + regs_of(ops[2])
            self.mfma_c = regs_of(ops[3].split()[0])
            self.uses = self.mfma_ab + self.mfma_c
        elif op.startswith("v_"):
            self.kind = "valu"
            self.is_trans = op.startswith(TRANS)
            self.opsel = "sdwa" in op or "op_sel" in t
            if op.startswith("v_permlane") and "swap" in op:
                self.defs = regs_of(ops[0]) + regs_of(ops[1])
                self.uses = list(self.defs)
            elif op.startswith(("v_add_co", "v_sub_co", "v_addc_co", "v_subb_co")):
                self.defs = regs_of(ops[0]) + regs_of(ops[1])
                self.uses = [r for o in ops[2:] for r in regs_of(o)]
            else:
                self.defs = regs_of(ops[0])
                self.uses = [r for o in ops[1:] for r in regs_of(o)]
                if op.startswith(("v_fmac", "v_dot2c", "v_writelane")) or "UNUSED_PRESERVE" in t:
                    self.uses += self.defs
                if op.startswith("v_cndmask") and len(ops) == 3:
                    self.uses += [("vcc", 0), ("vcc", 1)]
            if op.startswith("v_cmpx"):
                self.defs += [("exec", 0), ("exec", 1)]
        elif op.startswith("ds_"):
            self.kind = "ds"
            if op.startswith(("ds_read", "ds_bpermute", "ds_permute", "ds_swizzle")):
                self.defs = regs_of(ops[0])
                self.uses = [r for o in ops[1:] for r in regs_of(o)]
            else:
                self.uses = [r for o in ops for r in regs_of(o)]
        elif op.startswith(("buffer_", "global_")):
            self.kind = "vmem"
            words = t.split()
            self.lds_dma = "lds" in words
            allr = [r for o in ops for r in regs_of(o)]
            if op in ("buffer_wbl2", "buffer_inv"):
                pass
            elif self.lds_dma:
                self.uses = allr + [("m0", 0)]
            elif "load" in op:
                self.defs = regs_of(ops[0])
                self.uses = [r for o in ops[1:] for r in regs_of(o)]
            elif "atomic" in op:
                self.uses = allr
                if "sc0" in words:
                    self.defs = regs_of(ops[0])
            else:
                self.uses = allr
                if op.startswith("buffer_store"):
                    self.store_data = regs_of(ops[0])
                else:
                    self.store_data = regs_of(ops[1])
                if not op.endswith(("x3", "x4")):
                    self.store_data = []
        elif op.startswith("s_"):
            self.kind = "salu"
            if op == "s_nop":
                self.ws = int(ops[0], 0) + 1
            elif op.startswith(("s_cbranch", "s_branch")):
                self.kind = "branch"
                self.target = ops[0]
                if "vcc" in op:
                    self.uses = [("vcc", 0), ("vcc", 1)]
                if "exec" in op:
                    self.uses = [("exec", 0), ("exec", 1)]
            elif op.startswith(("s_cmp", "s_waitcnt", "s_barrier", "s_endpgm", "s_setprio", "s_sleep", "s_bitcmp")):
                self.uses = [r for o in ops for r in regs_of(o)]
            else:
                self.defs = regs_of(ops[0]) if ops else []
                self.uses = [r for o in ops[1:] for r in regs_of(o)]
                if "saveexec" in op:
                    self.defs += [("exec", 0), ("exec", 1)]
        else:
            raise ValueError("cannot classify: " + text)

    @staticmethod
    def _split(rest):
        out, depth, cur = [], 0, ""
        for ch in rest:
            if ch == "[":
                depth += 1
            elif ch == "]":
                depth -= 1
            if ch == "," and depth == 0:
                out.append(cur)
                cur = ""
            else:
                cur += ch
        if cur.strip():
            out.append(cur)
        return out


def _isvec(r):
    return r[0] in ("v", "a")


def _issca(r):
    return r[0] in ("s", "vcc")


XDL_TO_VALU = {2: 5, 4: 8, 8: 12, 16: 20}
XDL_TO_C_OVERLAP = {2: 4, 4: 6, 8: 10, 16: 18}
XDL_C_WAR = {2: 1, 4: 3, 8: 7, 16: 15}


def required_ws(p, c):
    need = 0
    pd = set(p.defs)
    cu, cd = set(c.uses), set(c.defs)
    if p.kind == "mfma":
        if c.kind == "mfma":
            if pd & set(c.mfma_ab):
                need = max(need, XDL_TO_VALU[p.passes])
            ov = pd & set(c.mfma_c)
            if ov:
                same = p.defs == c.mfma_c and p.passes == c.passes
                if not same:
                    need = max(need, XDL_TO_C_OVERLAP[p.passes])
                elif p.passes == 2:
                    need = max(need, 2)
            elif pd & cd:
                need = max(need, XDL_TO_C_OVERLAP[p.passes])
        elif c.kind in ("valu", "ds", "vmem"):
            if pd & (cu | cd):
                need = max(need, XDL_TO_VALU[p.passes])
            if c.kind == "valu" and set(p.mfma_c) & cd:
                need = max(need, XDL_C_WAR[p.passes])
    elif p.kind == "valu":
        pv = {r for r in pd if _isvec(r)}
        ps = {r for r in pd if _issca(r)}
        if c.kind == "mfma" and pv & cu:
            need = max(need, 2)
        if c.kind == "mfma" and ("exec", 0) in pd:
            need = max(need, 4)
        if p.op.startswith("v_dot") and c.kind in ("valu", "vmem", "ds", "mfma") and pv & (cu | cd):
            if not (c.op == p.op and not (pv & set(regs_of(",".join(Ins._split(c.text.split(None, 1)[1])[1:3]))))):
                need = max(need, 3)
        if c.kind == "valu":
            if c.op.startswith("v_permlane") and pv & cu:
                need = max(need, 2)
            if c.op.startswith(("v_readlane", "v_readfirstlane")) and pv & cu:
                need = max(need, 1)
            if ("dpp" in c.text or "quad_perm" in c.text or "row_" in c.text) and pv & cu:
                need = max(need, 2)
            if p.is_trans and not c.is_trans and pv & cu:
                need = max(need, 1)
            if p.opsel and pv & (cu | cd):
                need = max(need, 1)
            if ps & cu:
                need = max(need, 4 if c.op.startswith(("v_readlane", "v_writelane", "v_div_fmas")) else 2)
            if ("exec", 0) in pd:
                need = max(need, 5 if "dpp" in c.text else 4 if c.op.startswith(("v_read", "v_writelane", "v_permlane")) else 0)
        if c.kind == "vmem" and ps & cu:
            need = max(need, 5)
        if c.kind == "salu" and ps & cu:
            need = max(need, 4)
        if c.kind == "branch" and ps & cu:
            need = max(need, 5)
    elif p.kind == "vmem":
        if p.store_data and set(p.store_data) & cd:
            need = max(need, 2 if c.kind == "valu" else 1)
    elif p.kind == "salu":
        if ("m0", 0) in pd and c.kind == "vmem" and c.lds_dma:
            need = max(need, 1)
    return need


WINDOW = 24


class Kernel:
    def __init__(self, name):
        self.name = name
        self.lines = []

    def __call__(self, text):
        for ln in text.split("\n"):
            ln = ln.strip()
            if ln:
                self.lines.append(ln)

    def label(self, name):
        self.lines.append(name + ":")

    def stamp(self, idx, sreg=88, dbgptr_loaded=False):
        self(f"s_memtime s[{sreg}:{sreg+1}]")
        self(f"s_waitcnt lgkmcnt(0)")
        self(f"s_mov_b32 s{70+2*idx}, s{sreg}")
        self(f"s_memrealtime s[{sreg}:{sreg+1}]")
        self(f"s_waitcnt lgkmcnt(0)")
        self(f"s_mov_b32 s{71+2*idx}, s{sreg}")

    def dump_stamps(self, n, wave_sgpr, off=0x2000000):
        lab = f"{self.name}_ds{len(self.lines)}"
        self(f"s_cmp_lg_u32 s{wave_sgpr}, 0")
        self(f"s_cbranch_scc1 {lab}")
        self("s_load_dwordx2 s[88:89], s[0:1], 72")
        self("s_waitcnt lgkmcnt(0)")
        self("s_mov_b32 s90, 0x10000000")
        self("s_mov_b32 s91, 0x20000")
        self("s_mov_b32 s92, s88")
        self("s_mov_b32 s93, s89")
        self("s_mov_b32 s94, 0x10000000")
        self("s_mov_b32 s95, 0x20000")
        self(f"s_lshl_b32 s88, s2, 6")
        self(f"s_add_u32 s88, s88, {off}")
        for i in range(2 * n):
            self(f"v_mov_b32 v0, s{70+i}")
            self(f"v_mov_b32 v1, s88")
            self(f"buffer_store_dword v0, v1, s[92:95], 0 offen offset:{4*i}")
        self("s_waitcnt vmcnt(0)")
        self.label(lab)

    def dbg_time(self, word, back, mode):
        lab = f"{self.name}_dt{len(self.lines)}"
        if mode == "min":
            self("v_mov_b32 v253, v0")
        self("s_load_dwordx2 s[88:89], s[0:1], 64")
        self("s_memrealtime s[90:91]")
        self("s_waitcnt lgkmcnt(0)")
        self(f"s_add_u32 s92, s88, {-back}")
        self("s_addc_u32 s93, s89, 0")
        self("s_mov_b32 s94, 256")
        self("s_mov_b32 s95, 0x20000")
        if mode == "min":
            self("s_not_b32 s90, s90")
        self("s_and_b32 s91, s2, 15")
        self("s_cmp_lg_u32 s91, 0")
        self(f"s_cbranch_scc1 {lab}")
        self("v_cmp_eq_u32 vcc, 0, v253")
        self("s_and_saveexec_b64 s[88:89], vcc")
        self(f"s_cbranch_execz {lab}_r")
        self("v_mov_b32 v254, s90")
        self(f"v_mov_b32 v255, {4 * word}")
        self("buffer_atomic_umax v254, v255, s[92:95], 0 offen")
        self.label(lab + "_r")
        self("s_mov_b64 exec, s[88:89]")
        self.label(lab)

    def code_prefetch(self, start_label, nbytes, wave_sgpr, vtmp, vdst, stmp):
        lab = f"{self.name}_pf{len(self.lines)}"
        self(f"s_getpc_b64 s[{stmp}:{stmp + 1}]")
        self.label(lab)
        self(f"s_sub_u32 s{stmp}, s{stmp}, {lab}-{start_label}")
        self(f"s_subb_u32 s{stmp + 1}, s{stmp + 1}, 0")
        self(f"s_lshr_b32 s{stmp + 2}, s2, 3")
        self(f"s_lshl_b32 s{stmp + 2}, s{stmp + 2}, 3")
        self(f"s_add_u32 s{stmp + 2}, s{stmp + 2}, s{wave_sgpr}")
        self(f"s_lshl_b32 s{stmp + 2}, s{stmp + 2}, 10")
        self(f"s_cmp_ge_u32 s{stmp + 2}, {nbytes}")
        self(f"s_cbranch_scc1 {lab}_done")
        self(f"v_and_b32 v{vtmp}, 63, v0")
        self(f"v_lshlrev_b32 v{vtmp}, 4, v{vtmp}")
        self(f"v_add_u32 v{vtmp}, s{stmp + 2}, v{vtmp}")
        self(f"global_load_dwordx4 v[{vdst}:{vdst + 3}], v{vtmp}, s[{stmp}:{stmp + 1}]")
        self.label(lab + "_done")

    def finalize(self, verbose=False):
        ins = [Ins(t) for t in self.lines]
        out = []
        inserted = 0
        for c in ins:
            if c.kind in ("label", "dir"):
                out.append(c)
                continue
            dist = 0
            lack = 0
            who = None
            for p in reversed(out):
                if p.kind in ("label", "dir"):
                    continue
                if dist >= WINDOW:
                    break
                need = required_ws(p, c)
                if need - dist > lack:
                    lack, who = need - dist, p
                dist += p.ws
                if p.op in ("s_branch", "s_endpgm"):
                    break
            if lack > 0:
                if verbose:
                    print(f"; nop {lack} before [{c.text}] after [{who.text}]")
                n = lack
                while n > 0:
                    k = min(n, 16)
                    out.append(Ins(f"s_nop {k - 1}"))
                    n -= k
                inserted += lack
            out.append(c)
        self._check_edges(out)
        self.nops_inserted = inserted
        return "\n".join(("" if i.kind == "label" else "  ") + i.text for i in out)

    def _check_edges(self, out):
        labels = {i.op[:-1]: n for n, i in enumerate(out) if i.kind == "label"}
        for n, b in enumerate(out):
            if b.kind != "branch" or b.target not in labels:
                continue
            tail = []
            d = 0
            for p in reversed(out[: n + 1]):
                if p.kind in ("label", "dir"):
                    continue
                tail.append(p)
                d += p.ws
                if d >= WINDOW:
                    break
            head = []
            d = 0
            for c in out[labels[b.target]:]:
                if c.kind in ("label", "dir"):
                    continue
                head.append(c)
                d += c.ws
                if d >= WINDOW or c.op in ("s_branch", "s_endpgm"):
                    break
            hd = 0
            for c in head:
                dist = hd
                for p in tail:
                    need = required_ws(p, c)
                    if need > dist:
                        raise RuntimeError(
                            f"hazard across branch to {b.target}: [{p.text}] -> [{c.text}] needs {need}, has {dist}")
                    dist += p.ws
                hd += c.ws


def descriptor(name, vgpr, sgpr=96, accum=None, wg_y=False):
    accum = accum if accum is not None else (vgpr + 3) // 4 * 4
    return f""".p2align 6
.amdhsa_kernel {name}
  .amdhsa_next_free_vgpr {vgpr}
  .amdhsa_next_free_sgpr {sgpr}
  .amdhsa_accum_offset {accum}
  .amdhsa_group_segment_fixed_size 0
  .amdhsa_kernarg_size 80
  .amdhsa_user_sgpr_count 2
  .amdhsa_user_sgpr_kernarg_segment_ptr 1
  .amdhsa_system_sgpr_workgroup_id_x 1
  .amdhsa_float_denorm_mode_32 3
.end_amdhsa_kernel"""
```

```python
import sys, importlib
sys.path.insert(0, "gen")
NAME = "gated_mix__softmax_full_mha__sliding_local_dilated__prompt"
HEADER = open(f"cdna_kernels/{NAME}.s.ref").read().split("; Override launch")[0]

def assemble(mods, out, verbose=False):
    from asmlib import descriptor
    launches, texts, descs = [], [], []
    for m in mods:
        k, name, cfg = m
        body = k.finalize(verbose)
        if cfg.get("single"):
            launches.append(f"; @launch grid=({cfg['grid']},1,1) block=({cfg['block']},1,1) lds={cfg['lds']}")
        else:
            launches.append(f"; @launch kernel={name} grid=({cfg['grid']},1,1) block=({cfg['block']},1,1) lds={cfg['lds']}")
        texts.append(f".globl {name}\n.p2align 8\n.type {name},@function\n{name}:\n{body}")
        descs.append(descriptor(name, cfg["vgpr"], cfg.get("sgpr", 96), cfg.get("accum")))
        print(f"{name}: {len(body.splitlines())} lines, nops inserted {k.nops_inserted}", file=sys.stderr)
    s = HEADER + "\n".join(launches) + "\n"
    s += '.amdgcn_target "amdgcn-amd-amdhsa--gfx950"\n.text\n' + "\n".join(texts) + "\ntext_end:"
    s += '\n.section .rodata,"a"\n' + "\n".join(descs) + "\n"
    open(out, "w").write(s)

if __name__ == "__main__":
    import argparse
    ap = argparse.ArgumentParser()
    ap.add_argument("mods")
    ap.add_argument("-o", default="out.s")
    ap.add_argument("-v", action="store_true")
    a = ap.parse_args()
    mods = []
    for m in a.mods.split(","):
        mod, _, args = m.partition(":")
        kw = dict(x.split("=") for x in args.split("/") if x)
        kw = {k_: int(v_) for k_, v_ in kw.items()}
        r = importlib.import_module(mod).build(**kw)
        mods += r if isinstance(r, list) else [r]
    assemble(mods, a.o, a.v)
```
